```python
import torch

def _softmax(x, axis=-1):
    return torch.softmax(x, dim=axis)
def _gelu(x):
    return torch.nn.functional.gelu(x, approximate="tanh")
def _silu(x):
    return torch.nn.functional.silu(x)
def _sigmoid(x):
    return torch.sigmoid(x)
def _layernorm(x, axis=-1, eps=1e-5):
    m = x.mean(dim=axis, keepdim=True)
    v = x.var(dim=axis, keepdim=True, unbiased=False)
    return (x - m) / torch.sqrt(v + eps)
def _scatter_add(tgt, idx, src, axis=0):
    return tgt.clone().index_add_(axis, idx, src)
def _segment_sum(src, seg, n):
    out = torch.zeros((n,) + src.shape[1:], dtype=src.dtype)
    return out.index_add_(0, seg, src)
def _pad(x, pw):
    flat = tuple(v for pair in reversed(pw) for v in pair)
    return torch.nn.functional.pad(x, flat)

kernel_name = 'parallel_sum__sliding_local_dilated__glu_gated_reglu__prompt'

def setup_inputs():

    _w = (lambda a: (lambda t: t.to(torch.bfloat16) if t.is_floating_point() else t)(torch.as_tensor(a)))
    def _A_setup():
        B, S, D = 1, 2048, 640
        return {
            "x": _w((lambda *s: torch.randn(*s, dtype=torch.bfloat16) * 0.05)(B, S, D)),
            "wqkv": _w((lambda *s: torch.randn(*s, dtype=torch.bfloat16) * 0.05)(D, 3 * D)),
            "wo": _w((lambda *s: torch.randn(*s, dtype=torch.bfloat16) * 0.05)(D, D)),
        }
    _A_in = _A_setup()

    def _B_setup():
        B, S, D, F = 1, 2048, 640, 1728
        return {
            "x": _w((lambda *s: torch.randn(*s, dtype=torch.bfloat16) * 0.05)(B, S, D)),
            "W_gate": _w((lambda *s: torch.randn(*s, dtype=torch.bfloat16) * 0.8)(D, F) * (2.0 / D) ** 0.5),
            "W_up": _w((lambda *s: torch.randn(*s, dtype=torch.bfloat16) * 0.8)(D, F) * (2.0 / D) ** 0.5),
            "W_down": _w((lambda *s: torch.randn(*s, dtype=torch.bfloat16) * 0.8)(F, D) * (1.0 / F) ** 0.5),
        }
    _B_in = _B_setup()

    return {
        "A_x": _A_in["x"],
        "A_wqkv": _A_in["wqkv"],
        "A_wo": _A_in["wo"],
        "B_x": _B_in["x"],
        "B_W_gate": _B_in["W_gate"],
        "B_W_up": _B_in["W_up"],
        "B_W_down": _B_in["W_down"],
    }

def reference(A_x, A_wqkv, A_wo, B_x, B_W_gate, B_W_up, B_W_down):
    def _A_ref(x, wqkv, wo):
        B, S, D = x.shape
        H = 32; Dh = D // H
        W, dil = 8, 2
        qkv = (lambda x, *d: x.permute(*d))((x @ wqkv).reshape(B, S, 3, H, Dh), 2, 0, 3, 1, 4)
        q, k, v = qkv[0], qkv[1], qkv[2]
        scale = Dh ** -0.5
        pos = torch.arange(S)
        off = torch.arange(W) * dil
        idx = pos[:, None] - off[None, :]
        mask = idx >= 0
        idx_c = torch.where(mask, idx, 0).reshape(-1)
        kg = k[:, :, idx_c, :].reshape(B, H, S, W, Dh)
        vg = v[:, :, idx_c, :].reshape(B, H, S, W, Dh)
        logits = torch.einsum("bhsd,bhswd->bhsw", q, kg) * scale
        logits = torch.where(mask[None, None, :, :], logits, -1e9)
        attn = _softmax(logits, axis=-1)
        o = torch.einsum("bhsw,bhswd->bhsd", attn, vg)
        return (lambda x, *d: x.permute(*d))(o, 0, 2, 1, 3).reshape(B, S, D) @ wo

    def _B_ref(x, W_gate, W_up, W_down):
        gate = torch.einsum("bsd,df->bsf", x, W_gate)
        up = torch.einsum("bsd,df->bsf", x, W_up)
        gate = gate * (lambda x, dt: x.to(dt))(gate > 0, gate.dtype)
        h = gate * up
        return torch.einsum("bsf,fd->bsd", h, W_down)

    x = A_x
    xn = _layernorm(x, axis=-1)
    return x + _A_ref(xn, A_wqkv, A_wo) + _B_ref(xn, B_W_gate, B_W_up, B_W_down)
```

```python
class Asm:
    def __init__(self):
        self.lines = []
        self.lbl = 0
    def __call__(self, s):
        self.lines.append("    " + s)
    def raw(self, s):
        self.lines.append(s)
    def label(self, name):
        self.lines.append(name + ":")
    def newlabel(self, base="L"):
        self.lbl += 1
        return f"{base}_{self.lbl}"
    def text(self):
        return "\n".join(self.lines) + "\n"

def vr(base, n=1):
    return f"v{base}" if n == 1 else f"v[{base}:{base+n-1}]"
def sr(base, n=1):
    return f"s{base}" if n == 1 else f"s[{base}:{base+n-1}]"

def kernel_header(a, name):
    a.raw(f".globl {name}")
    a.raw(".p2align 8")
    a.raw(f".type {name},@function")
    a.raw(f"{name}:")

def kernel_desc(name, vgprs, sgprs=100, accum=None):
    if accum is None:
        accum = (vgprs + 3) // 4 * 4
    return f""".amdhsa_kernel {name}
  .amdhsa_next_free_vgpr {vgprs}
  .amdhsa_next_free_sgpr {sgprs}
  .amdhsa_accum_offset {accum}
  .amdhsa_group_segment_fixed_size 0
  .amdhsa_kernarg_size 80
  .amdhsa_user_sgpr_count 2
  .amdhsa_user_sgpr_kernarg_segment_ptr 1
  .amdhsa_system_sgpr_workgroup_id_x 1
.end_amdhsa_kernel
"""

def make_srd(a, dst, lo, hi, nbytes):
    a(f"s_mov_b32 s{dst}, s{lo}")
    a(f"s_and_b32 s{dst+1}, s{hi}, 0xffff")
    a(f"s_mov_b32 s{dst+2}, {nbytes}")
    a(f"s_mov_b32 s{dst+3}, 0x20000")
```

```python
import sys
from asmlib import *

S, D, F, H, DH = 2048, 640, 1728, 32, 20
XN_OFF = 0
QKV_OFF = 0x400000
A2_OFF = 0x1000000
XN_BYTES = S * D * 2
QKV_BYTES = S * 3 * D * 2
K2 = D + F
A2_BYTES = S * K2 * 2
NAME = "parallel_sum__sliding_local_dilated__glu_gated_reglu__prompt"

def add64(a, lo, hi, imm):
    a(f"s_add_u32 s{lo}, s{lo}, {imm}")
    a(f"s_addc_u32 s{hi}, s{hi}, 0")

def gen_ln(a):
    name = "ln_kernel"
    kernel_header(a, name)
    a("s_cmp_ge_u32 s2, 512")
    a("s_cbranch_scc1 ln_done")
    a("s_load_dwordx2 s[4:5], s[0:1], 0")
    a("s_load_dwordx2 s[6:7], s[0:1], 72")
    a("v_lshrrev_b32 v1, 6, v0")
    a("v_and_b32 v2, 63, v0")
    a("s_lshl_b32 s3, s2, 2")
    a("v_add_u32 v1, s3, v1")
    a("v_mul_u32_u24 v3, 0x500, v1")
    a("v_lshl_add_u32 v3, v2, 2, v3")
    a("s_waitcnt lgkmcnt(0)")
    make_srd(a, 8, 4, 5, XN_BYTES)
    make_srd(a, 12, 6, 7, XN_BYTES)
    for i in range(5):
        a(f"buffer_load_dword v{10+i}, v3, s[8:11], 0 offen offset:{256*i}")
    a("s_waitcnt vmcnt(0)")
    for i in range(5):
        a(f"v_lshlrev_b32 v{20+2*i}, 16, v{10+i}")
        a(f"v_and_b32 v{21+2*i}, 0xffff0000, v{10+i}")
    a("v_add_f32 v30, v20, v21")
    for i in range(2, 10):
        a(f"v_add_f32 v30, v30, v{20+i}")
    def wave_sum(reg):
        for off in (0x041F, 0x081F, 0x101F, 0x201F, 0x401F):
            a(f"ds_swizzle_b32 v31, v{reg} offset:{off:#x}")
            a("s_waitcnt lgkmcnt(0)")
            a(f"v_add_f32 v{reg}, v{reg}, v31")
        a("s_nop 1")
        a(f"v_readlane_b32 s20, v{reg}, 0")
        a(f"v_readlane_b32 s21, v{reg}, 32")
        a("s_nop 3")
        a(f"v_mov_b32 v{reg}, s20")
        a(f"v_add_f32 v{reg}, s21, v{reg}")
    wave_sum(30)
    a("v_mul_f32 v30, 0x3acccccd, v30")
    a("v_mov_b32 v32, 0")
    for i in range(10):
        a(f"v_sub_f32 v33, v{20+i}, v30")
        a("v_fmac_f32 v32, v33, v33")
    wave_sum(32)
    a("v_mul_f32 v32, 0x3acccccd, v32")
    a("v_cvt_pk_bf16_f32 v34, v30, v32")
    a("s_nop 0")
    a("v_lshlrev_b32 v30, 16, v34")
    a("v_and_b32 v32, 0xffff0000, v34")
    a("v_add_f32 v32, 0x3727c5ac, v32")
    a("v_cvt_pk_bf16_f32 v32, v32, v32")
    a("s_nop 0")
    a("v_lshlrev_b32 v32, 16, v32")
    a("v_sqrt_f32 v32, v32")
    a("s_nop 1")
    a("v_cvt_pk_bf16_f32 v32, v32, v32")
    a("s_nop 0")
    a("v_lshlrev_b32 v32, 16, v32")
    a("v_rcp_f32 v35, v32")
    a("s_nop 1")
    for i in range(10):
        a(f"v_sub_f32 v{20+i}, v{20+i}, v30")
    for i in range(5):
        a(f"v_cvt_pk_bf16_f32 v{40+i}, v{20+2*i}, v{21+2*i}")
    a("s_nop 0")
    for i in range(5):
        a(f"v_lshlrev_b32 v{20+2*i}, 16, v{40+i}")
        a(f"v_and_b32 v{21+2*i}, 0xffff0000, v{40+i}")
    for i in range(10):
        a(f"v_mul_f32 v{20+i}, v{20+i}, v35")
    for i in range(5):
        a(f"v_cvt_pk_bf16_f32 v{40+i}, v{20+2*i}, v{21+2*i}")
    for i in range(5):
        a(f"buffer_store_dword v{40+i}, v3, s[12:15], 0 offen offset:{256*i}")
    a("s_waitcnt vmcnt(0)")
    a.label("ln_done")
    a("s_endpgm")
    return name, 48

G1_A0, G1_A1, G1_B0 = 0, 32768, 65536
G1_BBUF = 24640
G1_BLK1 = 12288 + 32
G1_LDS = G1_B0 + 2 * G1_BBUF
def gen_gemm1(a):
    name = "gemm1_kernel"
    kernel_header(a, name)
    a("s_cmp_ge_u32 s2, 224")
    a("s_cbranch_scc1 g1_done")
    a("s_load_dwordx2 s[4:5], s[0:1], 8")
    a("s_load_dwordx4 s[8:11], s[0:1], 32")
    a("s_load_dwordx2 s[6:7], s[0:1], 72")
    a("s_and_b32 s12, s2, 7")
    a("s_lshr_b32 s13, s2, 3")
    a("s_and_b32 s14, s12, 1")
    a("s_lshl_b32 s14, s14, 2")
    a("s_and_b32 s15, s13, 3")
    a("s_add_u32 s14, s14, s15")
    a("s_lshr_b32 s15, s12, 1")
    a("s_mul_i32 s15, s15, 7")
    a("s_lshr_b32 s16, s13, 2")
    a("s_add_u32 s15, s15, s16")
    a("v_lshrrev_b32 v1, 6, v0")
    a("s_nop 0")
    a("v_readfirstlane_b32 s17, v1")
    a("v_and_b32 v2, 63, v0")
    a("s_waitcnt lgkmcnt(0)")
    make_srd(a, 20, 6, 7, XN_BYTES)
    a("s_cmp_ge_u32 s15, 10")
    a("s_cbranch_scc1 g1_glu_setup")
    make_srd(a, 24, 4, 5, D * 3 * D * 2)
    a("s_mov_b32 s28, 3840")
    a("s_mul_i32 s29, s15, 384")
    a("s_and_b32 s30, s17, 1")
    a("s_mul_i32 s30, s30, 192")
    a("s_add_u32 s29, s29, s30")
    a("s_branch g1_setup_done")
    a.label("g1_glu_setup")
    a("s_and_b32 s30, s17, 1")
    a("s_cmp_eq_u32 s30, 1")
    a("s_cselect_b32 s31, s10, s8")
    a("s_cselect_b32 s32, s11, s9")
    make_srd(a, 24, 31, 32, D * F * 2)
    a("s_mov_b32 s28, 3456")
    a("s_sub_u32 s29, s15, 10")
    a("s_mul_i32 s29, s29, 192")
    a.label("g1_setup_done")
    for j in range(3):
        a(f"v_add_u32 v6, {64*j}, v2")
        a("v_mul_u32_u24 v7, 0xaaab, v6")
        a("v_lshrrev_b32 v7, 19, v7")
        a("v_mul_u32_u24 v8, 12, v7")
        a("v_sub_u32 v8, v6, v8")
        a("v_mul_lo_u32 v7, v7, s28")
        a("v_lshl_add_u32 v7, v8, 4, v7")
        a(f"v_subrev_u32 v{3+j}, {1024*j}, v7")
    a("s_lshr_b32 s34, s17, 1")
    a("s_lshl_b32 s34, s34, 4")
    a("s_mul_i32 s33, s34, s28")
    a("s_add_u32 s33, s33, s29")
    a("s_lshl_b32 s35, s28, 6")
    a("s_and_b32 s36, s17, 1")
    a(f"s_mul_i32 s36, s36, {G1_BLK1}")
    a("s_mul_i32 s37, s34, 192")
    a("s_add_u32 s36, s36, s37")
    a(f"s_add_u32 s36, s36, {G1_B0}")
    for e in range(2):
        a("v_lshrrev_b32 v6, 4, v2")
        a(f"v_add_u32 v6, {4*e}, v6")
        a("v_and_b32 v6, 7, v6")
        a("v_and_b32 v7, 7, v2")
        a("v_xor_b32 v7, v7, v6")
        a("v_lshrrev_b32 v8, 3, v2")
        a("v_mul_u32_u24 v8, 0x500, v8")
        a(f"v_lshl_add_u32 v{9+e}, v7, 4, v8")
    a("s_lshl_b32 s38, s14, 8")
    a("s_lshl_b32 s39, s17, 5")
    a("s_add_u32 s38, s38, s39")
    a("s_mul_i32 s40, s38, 1280")
    for j in range(1, 4):
        a(f"s_add_u32 s{40+j}, s40, {j*(8*1280-1024)}")
    a("s_lshl_b32 s44, s17, 12")
    a("s_lshr_b32 s45, s17, 1")
    a("s_lshl_b32 s45, s45, 6")
    a("v_and_b32 v6, 31, v2")
    a("v_add_u32 v6, s45, v6")
    a("v_lshrrev_b32 v7, 1, v6")
    a("v_and_b32 v7, 7, v7")
    a("v_lshrrev_b32 v8, 5, v2")
    for ks in range(4):
        a(f"v_add_u32 v15, {2*ks}, v8")
        a("v_xor_b32 v15, v15, v7")
        a("v_lshlrev_b32 v15, 4, v15")
        a(f"v_lshl_add_u32 v{11+ks}, v6, 7, v15")
    a("v_lshrrev_b32 v6, 4, v2")
    a("v_and_b32 v7, 1, v6")
    a(f"v_mul_u32_u24 v7, {G1_BLK1}, v7")
    a("v_lshrrev_b32 v8, 1, v6")
    a("v_lshlrev_b32 v8, 3, v8")
    a("v_and_b32 v16, 15, v2")
    a("v_lshrrev_b32 v17, 2, v16")
    a("v_add_u32 v8, v8, v17")
    a("v_mul_u32_u24 v8, 192, v8")
    a("v_add_u32 v7, v7, v8")
    a("v_and_b32 v16, 3, v16")
    a("v_lshl_add_u32 v7, v16, 3, v7")
    a("s_and_b32 s46, s17, 1")
    a("s_mul_i32 s46, s46, 96")
    a(f"s_add_u32 s46, s46, {G1_B0}")
    a("v_add_u32 v15, s46, v7")
    for i in range(96):
        a(f"v_mov_b32 v{100+i}, 0")

    def issue_dma(stage):
        buf = stage & 1
        a(f"s_add_u32 m0, s44, {G1_A0 if buf == 0 else G1_A1}")
        a("s_nop 0")
        for j in range(4):
            a(f"buffer_load_dwordx4 v{9+(j&1)}, s[20:23], s{40+j} offen offset:{1024*j} lds")
        a(f"s_add_u32 m0, s36, {buf*G1_BBUF}")
        a("s_nop 0")
        for j in range(3):
            a(f"buffer_load_dwordx4 v{3+j}, s[24:27], s33 offen offset:{1024*j} lds")
        for j in range(4):
            a(f"s_add_u32 s{40+j}, s{40+j}, 128")
        a("s_add_u32 s33, s33, s35")

    XF = 40
    WF = 56
    def issue_reads(buf, ks, st):
        for mi in range(2):
            off = (G1_A0 if buf == 0 else G1_A1) + mi * 4096
            a(f"ds_read_b128 v[{XF+st*8+mi*4}:{XF+st*8+mi*4+3}], v{11+ks} offset:{off}")
        for t in range(3):
            for h in range(2):
                off = buf * G1_BBUF + ks * 3072 + h * 768 + t * 32
                r = WF + st * 12 + t * 4 + h * 2
                a(f"ds_read_b64_tr_b16 v[{r}:{r+1}], v15 offset:{off}")
    def mfmas(st):
        for t in range(3):
            for mi in range(2):
                acc = 100 + (t * 2 + mi) * 16
                w = WF + st * 12 + t * 4
                x = XF + st * 8 + mi * 4
                a(f"v_mfma_f32_32x32x16_bf16 v[{acc}:{acc+15}], v[{w}:{w+3}], v[{x}:{x+3}], v[{acc}:{acc+15}]")

    issue_dma(0)
    for s in range(10):
        buf = s & 1
        a("s_waitcnt vmcnt(0)")
        a("s_barrier")
        issue_reads(buf, 0, 0)
        if s + 1 < 10:
            issue_dma(s + 1)
        for ks in range(4):
            if ks + 1 < 4:
                issue_reads(buf, ks + 1, (ks + 1) & 1)
                a("s_waitcnt lgkmcnt(8)")
            else:
                a("s_waitcnt lgkmcnt(0)")
            mfmas(ks & 1)
    a("s_nop 15")
    a("s_nop 15")
    a("v_and_b32 v6, 31, v2")
    a("s_lshl_b32 s38, s14, 8")
    a("s_add_u32 s38, s38, s45")
    a("v_add_u32 v6, s38, v6")
    a("v_lshrrev_b32 v7, 5, v2")
    a("v_lshlrev_b32 v7, 3, v7")
    a("s_cmp_ge_u32 s15, 10")
    a("s_cbranch_scc1 g1_epi_glu")
    add64(a, 6, 7, QKV_OFF)
    make_srd(a, 48, 6, 7, QKV_BYTES)
    a("v_mul_u32_u24 v8, 0xf00, v6")
    a("v_add_u32 v8, v8, v7")
    a("s_mul_i32 s52, s15, 384")
    a("s_and_b32 s53, s17, 1")
    a("s_mul_i32 s53, s53, 96")
    a("s_add_u32 s52, s52, s53")
    for t in range(3):
        for mi in range(2):
            acc = 100 + (t * 2 + mi) * 16
            for q in range(4):
                r = acc + q * 4
                a(f"v_cvt_pk_bf16_f32 v{20+q*2}, v{r}, v{r+1}")
                a(f"v_cvt_pk_bf16_f32 v{21+q*2}, v{r+2}, v{r+3}")
            for q in range(4):
                off = (mi * 32 * 3840) + (t * 16 + (q & 1) * 8) * 2 + (q >> 1) * 192
                if off < 4096:
                    a(f"buffer_store_dwordx2 v[{20+q*2}:{21+q*2}], v8, s[48:51], s52 offen offset:{off}")
                else:
                    a(f"s_add_u32 s54, s52, {off}")
                    a(f"buffer_store_dwordx2 v[{20+q*2}:{21+q*2}], v8, s[48:51], s54 offen")
    a("s_branch g1_end")
    a.label("g1_epi_glu")
    add64(a, 6, 7, A2_OFF)
    make_srd(a, 48, 6, 7, A2_BYTES)
    a(f"v_mul_u32_u24 v8, {K2*2}, v6")
    a("v_add_u32 v8, v8, v7")
    a("s_sub_u32 s52, s15, 10")
    a("s_mul_i32 s52, s52, 192")
    a("s_and_b32 s53, s17, 1")
    a("s_mul_i32 s53, s53, 96")
    a("s_add_u32 s52, s52, s53")
    a(f"s_add_u32 s52, s52, {D*2}")
    for t in range(3):
        for mi in range(2):
            acc = 100 + (t * 2 + mi) * 16
            for q in range(4):
                r = acc + q * 4
                a(f"v_cvt_pk_bf16_f32 v{20+q*2}, v{r}, v{r+1}")
                a(f"v_cvt_pk_bf16_f32 v{21+q*2}, v{r+2}, v{r+3}")
            a("s_nop 0")
            for p in range(4):
                a(f"v_lshlrev_b32 v{28+2*p}, 16, v{20+p}")
                a(f"v_and_b32 v{29+2*p}, 0xffff0000, v{20+p}")
                a(f"v_lshlrev_b32 v{36}, 16, v{24+p}")
                a(f"v_and_b32 v{37}, 0xffff0000, v{24+p}")
                a(f"v_max_f32 v{28+2*p}, 0, v{28+2*p}")
                a(f"v_max_f32 v{29+2*p}, 0, v{29+2*p}")
                a(f"v_mul_f32 v{28+2*p}, v{28+2*p}, v36")
                a(f"v_mul_f32 v{29+2*p}, v{29+2*p}, v37")
            for p in range(4):
                a(f"v_cvt_pk_bf16_f32 v{20+p}, v{28+2*p}, v{29+2*p}")
            for q in range(2):
                off = (mi * 32 * K2 * 2) + (t * 16 + q * 8) * 2
                a(f"s_add_u32 s54, s52, {off}")
                a(f"buffer_store_dwordx2 v[{20+q*2}:{21+q*2}], v8, s[48:51], s54 offen")
    a.label("g1_end")
    a("s_waitcnt vmcnt(0)")
    a.label("g1_done")
    a("s_endpgm")
    return name, 200

def gen_attn(a):
    name = "attn_kernel"
    kernel_header(a, name)
    a("s_cmp_ge_u32 s2, 256")
    a("s_cbranch_scc1 at_done")
    a("s_load_dwordx2 s[6:7], s[0:1], 72")
    a("s_lshl_b32 s3, s2, 8")
    a("v_add_u32 v1, s3, v0")
    a("v_and_b32 v2, 31, v1")
    a("v_lshrrev_b32 v3, 5, v1")
    a("v_mul_u32_u24 v4, 40, v2")
    a("s_waitcnt lgkmcnt(0)")
    a(f"s_add_u32 s8, s6, {QKV_OFF}")
    a("s_addc_u32 s9, s7, 0")
    make_srd(a, 12, 8, 9, QKV_BYTES)
    a(f"s_add_u32 s8, s6, {A2_OFF}")
    a("s_addc_u32 s9, s7, 0")
    make_srd(a, 16, 8, 9, A2_BYTES)
    a("v_mul_u32_u24 v5, 0xf00, v3")
    a("v_add_u32 v5, v5, v4")
    Q = 20
    for i in range(5):
        a(f"buffer_load_dwordx2 v[{Q+2*i}:{Q+2*i+1}], v5, s[12:15], 0 offen offset:{8*i}")
    KB = 32
    VB = 112
    for w in range(8):
        a(f"v_subrev_u32 v6, {2*w}, v3")
        a("v_max_i32 v6, 0, v6")
        a("v_mul_u32_u24 v6, 0xf00, v6")
        a("v_add_u32 v6, v6, v4")
        for i in range(5):
            a(f"buffer_load_dwordx2 v[{KB+w*10+2*i}:{KB+w*10+2*i+1}], v6, s[12:15], 0 offen offset:{1280+8*i}")
        for i in range(5):
            a(f"buffer_load_dwordx2 v[{VB+w*10+2*i}:{VB+w*10+2*i+1}], v6, s[12:15], 0 offen offset:{2560+8*i}")
    a("s_waitcnt vmcnt(0)")
    LG = 192
    for w in range(8):
        a(f"v_mov_b32 v{LG+w}, 0")
        for i in range(10):
            a(f"v_dot2_f32_bf16 v{LG+w}, v{Q+i}, v{KB+w*10+i}, v{LG+w}")
    for w in range(0, 8, 2):
        a(f"v_cvt_pk_bf16_f32 v{200+w//2}, v{LG+w}, v{LG+w+1}")
    a("s_nop 0")
    for w in range(0, 8, 2):
        a(f"v_lshlrev_b32 v{LG+w}, 16, v{200+w//2}")
        a(f"v_and_b32 v{LG+w+1}, 0xffff0000, v{200+w//2}")
    for w in range(8):
        a(f"v_mul_f32 v{LG+w}, 0x3e64f92e, v{LG+w}")
    for w in range(0, 8, 2):
        a(f"v_cvt_pk_bf16_f32 v{200+w//2}, v{LG+w}, v{LG+w+1}")
    a("s_nop 0")
    for w in range(0, 8, 2):
        a(f"v_lshlrev_b32 v{LG+w}, 16, v{200+w//2}")
        a(f"v_and_b32 v{LG+w+1}, 0xffff0000, v{200+w//2}")
    for w in range(1, 8):
        a(f"v_cmp_gt_u32 vcc, {2*w}, v3")
        a("s_nop 1")
        a(f"v_cndmask_b32 v{LG+w}, v{LG+w}, v7, vcc" if False else f"v_mov_b32 v7, 0xce6e6b28")
        a(f"v_cndmask_b32 v{LG+w}, v{LG+w}, v7, vcc")
    a(f"v_max_f32 v8, v{LG}, v{LG+1}")
    for w in range(2, 8):
        a(f"v_max_f32 v8, v8, v{LG+w}")
    a("v_mov_b32 v9, 0")
    for w in range(8):
        a(f"v_sub_f32 v{LG+w}, v{LG+w}, v8")
        a(f"v_mul_f32 v{LG+w}, 0x3fb8aa3b, v{LG+w}")
        a(f"v_exp_f32 v{LG+w}, v{LG+w}")
    a("s_nop 1")
    for w in range(8):
        a(f"v_add_f32 v9, v9, v{LG+w}")
    a("v_rcp_f32 v9, v9")
    a("s_nop 1")
    for w in range(8):
        a(f"v_mul_f32 v{LG+w}, v{LG+w}, v9")
    for w in range(0, 8, 2):
        a(f"v_cvt_pk_bf16_f32 v{200+w//2}, v{LG+w}, v{LG+w+1}")
    a("s_nop 0")
    for w in range(0, 8, 2):
        a(f"v_lshlrev_b32 v{LG+w}, 16, v{200+w//2}")
        a(f"v_and_b32 v{LG+w+1}, 0xffff0000, v{200+w//2}")
    O = 204
    for d in range(20):
        a(f"v_mov_b32 v{O+d}, 0")
    for w in range(8):
        for i in range(10):
            a(f"v_lshlrev_b32 v10, 16, v{VB+w*10+i}")
            a(f"v_and_b32 v11, 0xffff0000, v{VB+w*10+i}")
            a(f"v_fmac_f32 v{O+2*i}, v{LG+w}, v10")
            a(f"v_fmac_f32 v{O+2*i+1}, v{LG+w}, v11")
    for i in range(10):
        a(f"v_cvt_pk_bf16_f32 v{Q+i}, v{O+2*i}, v{O+2*i+1}")
    a(f"v_mul_u32_u24 v5, {K2*2}, v3")
    a("v_add_u32 v5, v5, v4")
    for i in range(5):
        a(f"buffer_store_dwordx2 v[{Q+2*i}:{Q+2*i+1}], v5, s[16:19], 0 offen offset:{8*i}")
    a("s_waitcnt vmcnt(0)")
    a.label("at_done")
    a("s_endpgm")
    return name, 232

G2_STAGE = 10240
G2_WOFF = 4096
G2_WAVE = 3 * G2_STAGE
G2_LDS = 4 * G2_WAVE
def gen_gemm2(a):
    name = "gemm2_kernel"
    kernel_header(a, name)
    a("s_cmp_ge_u32 s2, 256")
    a("s_cbranch_scc1 g2_done")
    a("s_load_dwordx2 s[4:5], s[0:1], 16")
    a("s_load_dwordx2 s[8:9], s[0:1], 48")
    a("s_load_dwordx2 s[6:7], s[0:1], 72")
    a("s_load_dwordx2 s[10:11], s[0:1], 0")
    a("s_load_dwordx2 s[56:57], s[0:1], 56")
    a("s_and_b32 s12, s2, 7")
    a("s_lshr_b32 s13, s2, 3")
    a("s_lshr_b32 s14, s12, 1")
    a("s_lshl_b32 s14, s14, 3")
    a("s_and_b32 s15, s13, 7")
    a("s_add_u32 s14, s14, s15")
    a("s_and_b32 s15, s12, 1")
    a("s_lshl_b32 s15, s15, 2")
    a("s_lshr_b32 s16, s13, 3")
    a("s_add_u32 s15, s15, s16")
    a("v_lshrrev_b32 v1, 6, v0")
    a("s_nop 0")
    a("v_readfirstlane_b32 s17, v1")
    a("v_and_b32 v2, 63, v0")
    a("s_waitcnt lgkmcnt(0)")
    a(f"s_add_u32 s6, s6, {A2_OFF}")
    a("s_addc_u32 s7, s7, 0")
    make_srd(a, 20, 6, 7, A2_BYTES)
    a("s_mul_i32 s18, s17, 18")
    a("s_min_u32 s19, s17, 2")
    a("s_add_u32 s18, s18, s19")
    a("s_lshl_b32 s18, s18, 5")
    a("v_lshrrev_b32 v4, 2, v2")
    a("v_and_b32 v5, 3, v2")
    a("v_lshrrev_b32 v6, 5, v2")
    a("v_lshlrev_b32 v6, 1, v6")
    a("v_xor_b32 v5, v5, v6")
    a(f"v_mul_u32_u24 v4, {K2*2}, v4")
    a("v_lshl_add_u32 v3, v5, 4, v4")
    a("s_lshl_b32 s29, s14, 6")
    a(f"s_mul_i32 s28, s29, {K2*2}")
    a("s_lshl_b32 s30, s18, 1")
    a("s_add_u32 s28, s28, s30")
    for j in range(6):
        a(f"v_add_u32 v10, {64*j}, v2")
        a("v_mul_u32_u24 v11, 0xaaab, v10")
        a("v_lshrrev_b32 v11, 19, v11")
        a("v_mul_u32_u24 v12, 12, v11")
        a("v_sub_u32 v12, v10, v12")
        a("v_lshrrev_b32 v13, 1, v12")
        a("v_lshrrev_b32 v14, 3, v11")
        a("v_and_b32 v14, 1, v14")
        a("v_xor_b32 v13, v13, v14")
        a("v_min_u32 v13, 4, v13")
        a("v_and_b32 v12, 1, v12")
        a("v_lshlrev_b32 v13, 5, v13")
        a("v_lshl_add_u32 v13, v12, 4, v13")
        a("v_mul_u32_u24 v11, 0x500, v11")
        a("v_add_u32 v13, v13, v11")
        a(f"v_subrev_u32 v{4+j}, {1024*j}, v13")
    a("s_mul_i32 s31, s15, 160")
    a(f"s_mov_b32 s58, {D*D*2}")
    a(f"s_mov_b32 s59, {F*D*2}")
    a(f"s_mul_i32 s32, s17, {G2_WAVE}")
    a("v_and_b32 v11, 15, v2")
    a("v_lshrrev_b32 v12, 4, v2")
    a("v_lshrrev_b32 v13, 3, v2")
    a("v_and_b32 v13, 1, v13")
    a("v_lshlrev_b32 v13, 1, v13")
    a("v_xor_b32 v12, v12, v13")
    a("v_lshlrev_b32 v12, 4, v12")
    a("v_lshl_add_u32 v10, v11, 6, v12")
    a("v_add_u32 v10, s32, v10")
    a("v_lshrrev_b32 v13, 4, v2")
    a("v_lshlrev_b32 v14, 3, v13")
    a("v_and_b32 v15, 15, v2")
    a("v_lshrrev_b32 v16, 2, v15")
    a("v_add_u32 v14, v14, v16")
    a("v_mul_u32_u24 v14, 192, v14")
    a("v_and_b32 v15, 3, v15")
    a("v_lshl_add_u32 v14, v15, 3, v14")
    a(f"v_add_u32 v14, {G2_WOFF}, v14")
    a("v_add_u32 v14, s32, v14")
    a("v_and_b32 v13, 1, v13")
    a("v_lshlrev_b32 v13, 5, v13")
    a("v_add_u32 v11, v14, v13")
    a("v_sub_u32 v12, v14, v13")
    for i in range(80):
        a(f"v_mov_b32 v{100+i}, 0")
    a("s_mov_b32 s33, s18")
    def issue_dma(slot):
        a("s_cmp_lt_u32 s33, 640")
        a("s_cselect_b32 s24, s4, s8")
        a("s_cselect_b32 s25, s5, s9")
        a("s_cselect_b32 s26, s58, s59")
        a("s_cselect_b32 s34, 0, 640")
        a("s_and_b32 s25, s25, 0xffff")
        a("s_mov_b32 s27, 0x20000")
        a("s_sub_u32 s34, s33, s34")
        a("s_mul_i32 s34, s34, 1280")
        a("s_add_u32 s34, s34, s31")
        a(f"s_add_u32 m0, s32, {slot*G2_STAGE}")
        a("s_mov_b32 s35, s28")
        for j in range(4):
            a(f"buffer_load_dwordx4 v3, s[20:23], s35 offen offset:{1024*j} lds")
            if j < 3:
                a(f"s_add_u32 s35, s35, {16*K2*2-1024}")
        a(f"s_add_u32 m0, s32, {slot*G2_STAGE+G2_WOFF}")
        a("s_nop 0")
        for j in range(6):
            if j < 4:
                a(f"buffer_load_dwordx4 v{4+j}, s[24:27], s34 offen offset:{1024*j} lds")
            else:
                if j == 4:
                    a(f"s_add_u32 m0, s32, {slot*G2_STAGE+G2_WOFF+4096}")
                    a("s_add_u32 s34, s34, 4096")
                    a("s_nop 0")
                a(f"buffer_load_dwordx4 v{4+j}, s[24:27], s34 offen offset:{1024*(j-4)} lds")
        a("s_add_u32 s33, s33, 32")
        a("s_add_u32 s28, s28, 64")
    XF = 40
    WF = 60
    def step(slot):
        for mi in range(4):
            a(f"ds_read_b128 v[{XF+mi*4}:{XF+mi*4+3}], v10 offset:{slot*G2_STAGE+mi*1024}")
        for t in range(5):
            for h in range(2):
                r = WF + t * 4 + h * 2
                a(f"ds_read_b64_tr_b16 v[{r}:{r+1}], v{11+(t&1)} offset:{slot*G2_STAGE+t*32+h*768}")
        a("s_waitcnt lgkmcnt(0)")
        for t in range(5):
            for mi in range(4):
                acc = 100 + (t * 4 + mi) * 4
                a(f"v_mfma_f32_16x16x32_bf16 v[{acc}:{acc+3}], v[{WF+t*4}:{WF+t*4+3}], v[{XF+mi*4}:{XF+mi*4+3}], v[{acc}:{acc+3}]")
    issue_dma(0)
    issue_dma(1)
    for i in range(19):
        issue_dma((i + 2) % 3)
        if i == 18:
            a("s_cmp_ge_u32 s17, 2")
            a("s_cbranch_scc1 g2_loop_done")
        a("s_waitcnt vmcnt(20)")
        step(i % 3)
    a.label("g2_loop_done")
    a("s_waitcnt vmcnt(0)")
    a("s_nop 7")
    a("s_barrier")
    a("v_and_b32 v13, 15, v2")
    a("v_lshrrev_b32 v14, 4, v2")
    a("v_lshlrev_b32 v14, 4, v14")
    a("v_mul_u32_u24 v13, 320, v13")
    a("v_add_u32 v13, v13, v14")
    a("s_mul_i32 s36, s17, 20480")
    a("v_add_u32 v13, s36, v13")
    for t in range(5):
        for mi in range(4):
            acc = 100 + (t * 4 + mi) * 4
            a(f"ds_write_b128 v13, v[{acc}:{acc+3}] offset:{mi*16*320+t*64}")
    a("s_waitcnt lgkmcnt(0)")
    a("s_barrier")
    a("v_lshrrev_b32 v14, 2, v0")
    a("v_and_b32 v15, 3, v0")
    a("v_mul_u32_u24 v16, 320, v14")
    a("v_mul_u32_u24 v17, 80, v15")
    a("v_add_u32 v16, v16, v17")
    for w in range(4):
        for i in range(5):
            a(f"ds_read_b128 v[{40+w*20+i*4}:{40+w*20+i*4+3}], v16 offset:{w*20480+i*16}")
    make_srd(a, 40, 10, 11, XN_BYTES)
    make_srd(a, 44, 56, 57, XN_BYTES)
    a("v_add_u32 v14, s29, v14")
    a("v_mul_u32_u24 v14, 0x500, v14")
    a("v_mul_u32_u24 v15, 40, v15")
    a("v_add_u32 v14, v14, v15")
    a("s_mov_b32 s37, s31")
    for i in range(5):
        a(f"buffer_load_dwordx2 v[{20+2*i}:{21+2*i}], v14, s[40:43], s37 offen offset:{8*i}")
    a("s_waitcnt lgkmcnt(0)")
    for i in range(20):
        a(f"v_add_f32 v{40+i}, v{40+i}, v{60+i}")
        a(f"v_add_f32 v{80+i}, v{80+i}, v{100+i}")
    for i in range(20):
        a(f"v_add_f32 v{40+i}, v{40+i}, v{80+i}")
    a("s_waitcnt vmcnt(0)")
    for i in range(10):
        a(f"v_lshlrev_b32 v30, 16, v{20+i}")
        a(f"v_and_b32 v31, 0xffff0000, v{20+i}")
        a(f"v_add_f32 v{40+2*i}, v{40+2*i}, v30")
        a(f"v_add_f32 v{41+2*i}, v{41+2*i}, v31")
    for i in range(10):
        a(f"v_cvt_pk_bf16_f32 v{20+i}, v{40+2*i}, v{41+2*i}")
    for i in range(5):
        a(f"buffer_store_dwordx2 v[{20+2*i}:{21+2*i}], v14, s[44:47], s37 offen offset:{8*i}")
    a("s_waitcnt vmcnt(0)")
    a.label("g2_done")
    a("s_endpgm")
    return name, 184

def main():
    a = Asm()
    hdr = open("cdna_kernels/" + NAME + ".s.ref").read().split("\n")
    top = [l for l in hdr if l.startswith(";") and "@launch" not in l and "Override" not in l and "grid=ceil" not in l]
    out = "\n".join(top) + "\n"
    out += "; @launch kernel=ln_kernel grid=(512,1,1) block=(256,1,1) lds=0\n"
    out += f"; @launch kernel=gemm1_kernel grid=(224,1,1) block=(512,1,1) lds={G1_LDS}\n"
    out += "; @launch kernel=attn_kernel grid=(256,1,1) block=(256,1,1) lds=0\n"
    out += f"; @launch kernel=gemm2_kernel grid=(256,1,1) block=(256,1,1) lds={G2_LDS}\n"
    out += '.amdgcn_target "amdgcn-amd-amdhsa--gfx950"\n.text\n'
    ks = []
    for g in (gen_ln, gen_gemm1, gen_attn, gen_gemm2):
        ks.append(g(a))
    out += a.text()
    out += '.section .rodata,"a"\n.p2align 6\n'
    for n, v in ks:
        out += ".p2align 6\n" + kernel_desc(n, v)
    path = sys.argv[1] if len(sys.argv) > 1 else "cdna_kernels/" + NAME + ".s"
    open(path, "w").write(out)
    print("wrote", path, len(out))
main()
```

```python
import sys
from asmlib import *

S, D, F, H, DH = 2048, 640, 1728, 32, 20
XN_OFF = 0
QKV_OFF = 0x400000
A2_OFF = 0x1000000
XN_BYTES = S * D * 2
QKV_BYTES = S * 3 * D * 2
K2 = D + F
A2_BYTES = S * K2 * 2
import os
OPT = set(os.environ.get("GENOPT", "").split(","))
NAME = "parallel_sum__sliding_local_dilated__glu_gated_reglu__prompt"

def add64(a, lo, hi, imm):
    a(f"s_add_u32 s{lo}, s{lo}, {imm}")
    a(f"s_addc_u32 s{hi}, s{hi}, 0")

def gen_ln(a):
    name = "ln_kernel"
    kernel_header(a, name)
    a("s_cmp_ge_u32 s2, 512")
    a("s_cbranch_scc1 ln_done")
    a("s_load_dwordx2 s[4:5], s[0:1], 0")
    a("s_load_dwordx2 s[6:7], s[0:1], 72")
    a("v_lshrrev_b32 v1, 6, v0")
    a("v_and_b32 v2, 63, v0")
    a("s_lshl_b32 s3, s2, 2")
    a("v_add_u32 v1, s3, v1")
    a("v_mul_u32_u24 v3, 0x500, v1")
    a("v_lshl_add_u32 v3, v2, 2, v3")
    a("s_waitcnt lgkmcnt(0)")
    make_srd(a, 8, 4, 5, XN_BYTES)
    make_srd(a, 12, 6, 7, XN_BYTES)
    for i in range(5):
        a(f"buffer_load_dword v{10+i}, v3, s[8:11], 0 offen offset:{256*i}")
    a("s_waitcnt vmcnt(0)")
    for i in range(5):
        a(f"v_lshlrev_b32 v{20+2*i}, 16, v{10+i}")
        a(f"v_and_b32 v{21+2*i}, 0xffff0000, v{10+i}")
    a("v_add_f32 v30, v20, v21")
    for i in range(2, 10):
        a(f"v_add_f32 v30, v30, v{20+i}")
    def wave_sum(reg):
        for off in (0x041F, 0x081F, 0x101F, 0x201F, 0x401F):
            a(f"ds_swizzle_b32 v31, v{reg} offset:{off:#x}")
            a("s_waitcnt lgkmcnt(0)")
            a(f"v_add_f32 v{reg}, v{reg}, v31")
        a("s_nop 1")
        a(f"v_readlane_b32 s20, v{reg}, 0")
        a(f"v_readlane_b32 s21, v{reg}, 32")
        a("s_nop 3")
        a(f"v_mov_b32 v{reg}, s20")
        a(f"v_add_f32 v{reg}, s21, v{reg}")
    wave_sum(30)
    a("v_mul_f32 v30, 0x3acccccd, v30")
    a("v_mov_b32 v32, 0")
    for i in range(10):
        a(f"v_sub_f32 v33, v{20+i}, v30")
        a("v_fmac_f32 v32, v33, v33")
    wave_sum(32)
    a("v_mul_f32 v32, 0x3acccccd, v32")
    a("v_cvt_pk_bf16_f32 v34, v30, v32")
    a("s_nop 0")
    a("v_lshlrev_b32 v30, 16, v34")
    a("v_and_b32 v32, 0xffff0000, v34")
    a("v_add_f32 v32, 0x3727c5ac, v32")
    a("v_cvt_pk_bf16_f32 v32, v32, v32")
    a("s_nop 0")
    a("v_lshlrev_b32 v32, 16, v32")
    a("v_sqrt_f32 v32, v32")
    a("s_nop 1")
    a("v_cvt_pk_bf16_f32 v32, v32, v32")
    a("s_nop 0")
    a("v_lshlrev_b32 v32, 16, v32")
    a("v_rcp_f32 v35, v32")
    a("s_nop 1")
    for i in range(10):
        a(f"v_sub_f32 v{20+i}, v{20+i}, v30")
    for i in range(5):
        a(f"v_cvt_pk_bf16_f32 v{40+i}, v{20+2*i}, v{21+2*i}")
    a("s_nop 0")
    for i in range(5):
        a(f"v_lshlrev_b32 v{20+2*i}, 16, v{40+i}")
        a(f"v_and_b32 v{21+2*i}, 0xffff0000, v{40+i}")
    for i in range(10):
        a(f"v_mul_f32 v{20+i}, v{20+i}, v35")
    for i in range(5):
        a(f"v_cvt_pk_bf16_f32 v{40+i}, v{20+2*i}, v{21+2*i}")
    for i in range(5):
        a(f"buffer_store_dword v{40+i}, v3, s[12:15], 0 offen offset:{256*i}")
    a("s_waitcnt vmcnt(0)")
    a.label("ln_done")
    a("s_endpgm")
    return name, 48

G1_A0, G1_A1, G1_B0 = 0, 32768, 65536
G1_BBUF = 24640
G1_BLK1 = 12288 + 32
G1_LDS = G1_B0 + 2 * G1_BBUF
def gen_gemm1(a):
    name = "gemm1_kernel"
    kernel_header(a, name)
    a("s_cmp_ge_u32 s2, 224")
    a("s_cbranch_scc1 g1_done")
    a("s_load_dwordx2 s[4:5], s[0:1], 8")
    a("s_load_dwordx4 s[8:11], s[0:1], 32")
    a("s_load_dwordx2 s[6:7], s[0:1], 72")
    a("s_and_b32 s12, s2, 7")
    a("s_lshr_b32 s13, s2, 3")
    a("s_and_b32 s14, s12, 1")
    a("s_lshl_b32 s14, s14, 2")
    a("s_and_b32 s15, s13, 3")
    a("s_add_u32 s14, s14, s15")
    a("s_lshr_b32 s15, s12, 1")
    a("s_mul_i32 s15, s15, 7")
    a("s_lshr_b32 s16, s13, 2")
    a("s_add_u32 s15, s15, s16")
    a("v_lshrrev_b32 v1, 6, v0")
    a("s_nop 0")
    a("v_readfirstlane_b32 s17, v1")
    a("v_and_b32 v2, 63, v0")
    a("s_waitcnt lgkmcnt(0)")
    make_srd(a, 20, 6, 7, XN_BYTES)
    a("s_cmp_ge_u32 s15, 10")
    a("s_cbranch_scc1 g1_glu_setup")
    make_srd(a, 24, 4, 5, D * 3 * D * 2)
    a("s_mov_b32 s28, 3840")
    a("s_mul_i32 s29, s15, 384")
    a("s_and_b32 s30, s17, 1")
    a("s_mul_i32 s30, s30, 192")
    a("s_add_u32 s29, s29, s30")
    a("s_branch g1_setup_done")
    a.label("g1_glu_setup")
    a("s_and_b32 s30, s17, 1")
    a("s_cmp_eq_u32 s30, 1")
    a("s_cselect_b32 s31, s10, s8")
    a("s_cselect_b32 s32, s11, s9")
    make_srd(a, 24, 31, 32, D * F * 2)
    a("s_mov_b32 s28, 3456")
    a("s_sub_u32 s29, s15, 10")
    a("s_mul_i32 s29, s29, 192")
    a.label("g1_setup_done")
    for j in range(3):
        a(f"v_add_u32 v6, {64*j}, v2")
        a("v_mul_u32_u24 v7, 0xaaab, v6")
        a("v_lshrrev_b32 v7, 19, v7")
        a("v_mul_u32_u24 v8, 12, v7")
        a("v_sub_u32 v8, v6, v8")
        a("v_mul_lo_u32 v7, v7, s28")
        a("v_lshl_add_u32 v7, v8, 4, v7")
        a(f"v_subrev_u32 v{3+j}, {1024*j}, v7")
    a("s_lshr_b32 s34, s17, 1")
    a("s_lshl_b32 s34, s34, 4")
    a("s_mul_i32 s33, s34, s28")
    a("s_add_u32 s33, s33, s29")
    a("s_lshl_b32 s35, s28, 6")
    a("s_and_b32 s36, s17, 1")
    a(f"s_mul_i32 s36, s36, {G1_BLK1}")
    a("s_mul_i32 s37, s34, 192")
    a("s_add_u32 s36, s36, s37")
    a(f"s_add_u32 s36, s36, {G1_B0}")
    for e in range(2):
        a("v_lshrrev_b32 v6, 4, v2")
        a(f"v_add_u32 v6, {4*e}, v6")
        a("v_and_b32 v6, 7, v6")
        a("v_and_b32 v7, 7, v2")
        a("v_xor_b32 v7, v7, v6")
        a("v_lshrrev_b32 v8, 3, v2")
        a("v_mul_u32_u24 v8, 0x500, v8")
        a(f"v_lshl_add_u32 v{9+e}, v7, 4, v8")
    a("s_lshl_b32 s38, s14, 8")
    a("s_lshl_b32 s39, s17, 5")
    a("s_add_u32 s38, s38, s39")
    a("s_mul_i32 s40, s38, 1280")
    for j in range(1, 4):
        a(f"s_add_u32 s{40+j}, s40, {j*(8*1280-1024)}")
    a("s_lshl_b32 s44, s17, 12")
    a("s_lshr_b32 s45, s17, 1")
    a("s_lshl_b32 s45, s45, 6")
    a("v_and_b32 v6, 31, v2")
    a("v_add_u32 v6, s45, v6")
    a("v_lshrrev_b32 v7, 1, v6")
    a("v_and_b32 v7, 7, v7")
    a("v_lshrrev_b32 v8, 5, v2")
    for ks in range(4):
        a(f"v_add_u32 v15, {2*ks}, v8")
        a("v_xor_b32 v15, v15, v7")
        a("v_lshlrev_b32 v15, 4, v15")
        a(f"v_lshl_add_u32 v{11+ks}, v6, 7, v15")
    a("v_lshrrev_b32 v6, 4, v2")
    a("v_and_b32 v7, 1, v6")
    a(f"v_mul_u32_u24 v7, {G1_BLK1}, v7")
    a("v_lshrrev_b32 v8, 1, v6")
    a("v_lshlrev_b32 v8, 3, v8")
    a("v_and_b32 v16, 15, v2")
    a("v_lshrrev_b32 v17, 2, v16")
    a("v_add_u32 v8, v8, v17")
    a("v_mul_u32_u24 v8, 192, v8")
    a("v_add_u32 v7, v7, v8")
    a("v_and_b32 v16, 3, v16")
    a("v_lshl_add_u32 v7, v16, 3, v7")
    a("s_and_b32 s46, s17, 1")
    a("s_mul_i32 s46, s46, 96")
    a(f"s_add_u32 s46, s46, {G1_B0}")
    a("v_add_u32 v15, s46, v7")
    for i in range(96):
        a(f"v_mov_b32 v{100+i}, 0")

    def issue_dma(stage):
        buf = stage & 1
        a(f"s_add_u32 m0, s44, {G1_A0 if buf == 0 else G1_A1}")
        a("s_nop 0")
        for j in range(4):
            a(f"buffer_load_dwordx4 v{9+(j&1)}, s[20:23], s{40+j} offen offset:{1024*j} lds")
        a(f"s_add_u32 m0, s36, {buf*G1_BBUF}")
        a("s_nop 0")
        for j in range(3):
            a(f"buffer_load_dwordx4 v{3+j}, s[24:27], s33 offen offset:{1024*j} lds")
        for j in range(4):
            a(f"s_add_u32 s{40+j}, s{40+j}, 128")
        a("s_add_u32 s33, s33, s35")

    XF = 40
    WF = 56
    def issue_reads(buf, ks, st):
        if "g1noreads" in OPT:
            return
        for mi in range(2):
            off = (G1_A0 if buf == 0 else G1_A1) + mi * 4096
            a(f"ds_read_b128 v[{XF+st*8+mi*4}:{XF+st*8+mi*4+3}], v{11+ks} offset:{off}")
        for t in range(3):
            for h in range(2):
                off = buf * G1_BBUF + ks * 3072 + h * 768 + t * 32
                r = WF + st * 12 + t * 4 + h * 2
                a(f"ds_read_b64_tr_b16 v[{r}:{r+1}], v15 offset:{off}")
    def mfmas(st):
        for t in range(3):
            for mi in range(2):
                acc = 100 + (t * 2 + mi) * 16
                w = WF + st * 12 + t * 4
                x = XF + st * 8 + mi * 4
                a(f"v_mfma_f32_32x32x16_bf16 v[{acc}:{acc+15}], v[{w}:{w+3}], v[{x}:{x+3}], v[{acc}:{acc+15}]")

    issue_dma(0)
    for s in range(10):
        buf = s & 1
        a("s_waitcnt vmcnt(0)")
        a("s_barrier")
        issue_reads(buf, 0, 0)
        if s + 1 < 10 and "g1nodma" not in OPT:
            issue_dma(s + 1)
        for ks in range(4):
            if ks + 1 < 4:
                issue_reads(buf, ks + 1, (ks + 1) & 1)
                a("s_waitcnt lgkmcnt(8)")
            else:
                a("s_waitcnt lgkmcnt(0)")
            if "g1nomfma" not in OPT:
                mfmas(ks & 1)
    a("s_nop 15")
    a("s_nop 15")
    EP = 400
    a("s_barrier")
    a("v_and_b32 v6, 31, v2")
    a("v_add_u32 v6, s45, v6")
    a(f"v_mul_u32_u24 v6, {EP}, v6")
    a("v_lshrrev_b32 v7, 5, v2")
    a("v_lshl_add_u32 v6, v7, 3, v6")
    a("s_and_b32 s53, s17, 1")
    a("s_mul_i32 s53, s53, 96")
    a("v_add_u32 v6, s53, v6")
    a("s_cmp_ge_u32 s15, 10")
    a("s_cbranch_scc1 g1_epi_glu")
    for t in range(3):
        for mi in range(2):
            acc = 100 + (t * 2 + mi) * 16
            for q in range(4):
                r = acc + q * 4
                a(f"v_cvt_pk_bf16_f32 v{20+q*2}, v{r}, v{r+1}")
                a(f"v_cvt_pk_bf16_f32 v{21+q*2}, v{r+2}, v{r+3}")
            for q in range(4):
                off = mi * 32 * EP + (t * 16 + (q & 1) * 8) * 2 + (q >> 1) * 192
                a(f"ds_write_b64 v6, v[{20+q*2}:{21+q*2}] offset:{off}")
    a("s_waitcnt lgkmcnt(0)")
    a("s_barrier")
    add64(a, 6, 7, QKV_OFF)
    make_srd(a, 48, 6, 7, QKV_BYTES)
    for j in range(12):
        a(f"v_add_u32 v8, {64*j}, v2")
        a("v_mul_u32_u24 v9, 0xaaab, v8")
        a("v_lshrrev_b32 v9, 20, v9")
        a("v_mul_u32_u24 v10, 24, v9")
        a("v_sub_u32 v10, v8, v10")
        a("s_lshl_b32 s54, s17, 5")
        a("v_add_u32 v9, s54, v9")
        a(f"v_mul_u32_u24 v11, {EP}, v9")
        a("v_lshl_add_u32 v11, v10, 4, v11")
        a("ds_read_b128 v[20:23], v11")
        a("s_lshl_b32 s54, s14, 8")
        a("v_add_u32 v9, s54, v9")
        a("v_mul_u32_u24 v9, 0xf00, v9")
        a("v_lshl_add_u32 v9, v10, 4, v9")
        a("s_mul_i32 s52, s15, 384")
        a("s_waitcnt lgkmcnt(0)")
        a("buffer_store_dwordx4 v[20:23], v9, s[48:51], s52 offen")
    a("s_branch g1_end")
    a.label("g1_epi_glu")
    for t in range(3):
        for mi in range(2):
            acc = 100 + (t * 2 + mi) * 16
            for q in range(4):
                r = acc + q * 4
                a(f"v_cvt_pk_bf16_f32 v{20+q*2}, v{r}, v{r+1}")
                a(f"v_cvt_pk_bf16_f32 v{21+q*2}, v{r+2}, v{r+3}")
            a("s_nop 0")
            for p in range(4):
                a(f"v_lshlrev_b32 v{28+2*p}, 16, v{20+p}")
                a(f"v_and_b32 v{29+2*p}, 0xffff0000, v{20+p}")
                a(f"v_lshlrev_b32 v{36}, 16, v{24+p}")
                a(f"v_and_b32 v{37}, 0xffff0000, v{24+p}")
                a(f"v_max_f32 v{28+2*p}, 0, v{28+2*p}")
                a(f"v_max_f32 v{29+2*p}, 0, v{29+2*p}")
                a(f"v_mul_f32 v{28+2*p}, v{28+2*p}, v36")
                a(f"v_mul_f32 v{29+2*p}, v{29+2*p}, v37")
            for p in range(4):
                a(f"v_cvt_pk_bf16_f32 v{20+p}, v{28+2*p}, v{29+2*p}")
            for q in range(2):
                off = mi * 32 * EP + (t * 16 + q * 8) * 2
                a(f"ds_write_b64 v6, v[{20+q*2}:{21+q*2}] offset:{off}")
    a("s_waitcnt lgkmcnt(0)")
    a("s_barrier")
    add64(a, 6, 7, A2_OFF)
    make_srd(a, 48, 6, 7, A2_BYTES)
    for j in range(6):
        a(f"v_add_u32 v8, {64*j}, v2")
        a("v_mul_u32_u24 v9, 0xaaab, v8")
        a("v_lshrrev_b32 v9, 19, v9")
        a("v_mul_u32_u24 v10, 12, v9")
        a("v_sub_u32 v10, v8, v10")
        a("s_lshl_b32 s54, s17, 5")
        a("v_add_u32 v9, s54, v9")
        a(f"v_mul_u32_u24 v11, {EP}, v9")
        a("v_lshl_add_u32 v11, v10, 4, v11")
        a("ds_read_b128 v[20:23], v11")
        a("s_lshl_b32 s54, s14, 8")
        a("v_add_u32 v9, s54, v9")
        a(f"v_mul_u32_u24 v9, {K2*2}, v9")
        a("v_lshl_add_u32 v9, v10, 4, v9")
        a("s_sub_u32 s52, s15, 10")
        a("s_mul_i32 s52, s52, 192")
        a(f"s_add_u32 s52, s52, {D*2}")
        a("s_waitcnt lgkmcnt(0)")
        a("buffer_store_dwordx4 v[20:23], v9, s[48:51], s52 offen")
    a.label("g1_end")
    a("s_waitcnt vmcnt(0)")
    a.label("g1_done")
    a("s_endpgm")
    return name, 200

def gen_attn(a):
    name = "attn_kernel"
    kernel_header(a, name)
    a("s_cmp_ge_u32 s2, 256")
    a("s_cbranch_scc1 at_done")
    a("s_load_dwordx2 s[6:7], s[0:1], 72")
    a("s_lshl_b32 s3, s2, 8")
    a("v_add_u32 v1, s3, v0")
    a("v_and_b32 v2, 31, v1")
    a("v_lshrrev_b32 v3, 5, v1")
    a("v_mul_u32_u24 v4, 40, v2")
    a("s_waitcnt lgkmcnt(0)")
    a(f"s_add_u32 s8, s6, {QKV_OFF}")
    a("s_addc_u32 s9, s7, 0")
    make_srd(a, 12, 8, 9, QKV_BYTES)
    a(f"s_add_u32 s8, s6, {A2_OFF}")
    a("s_addc_u32 s9, s7, 0")
    make_srd(a, 16, 8, 9, A2_BYTES)
    a("v_mul_u32_u24 v5, 0xf00, v3")
    a("v_add_u32 v5, v5, v4")
    Q = 20
    for i in range(5):
        a(f"buffer_load_dwordx2 v[{Q+2*i}:{Q+2*i+1}], v5, s[12:15], 0 offen offset:{8*i}")
    KB = 32
    VB = 112
    for w in range(8):
        a(f"v_subrev_u32 v6, {2*w}, v3")
        a("v_max_i32 v6, 0, v6")
        a("v_mul_u32_u24 v6, 0xf00, v6")
        a("v_add_u32 v6, v6, v4")
        for i in range(5):
            a(f"buffer_load_dwordx2 v[{KB+w*10+2*i}:{KB+w*10+2*i+1}], v6, s[12:15], 0 offen offset:{1280+8*i}")
        for i in range(5):
            a(f"buffer_load_dwordx2 v[{VB+w*10+2*i}:{VB+w*10+2*i+1}], v6, s[12:15], 0 offen offset:{2560+8*i}")
    a("s_waitcnt vmcnt(0)")
    LG = 192
    for w in range(8):
        a(f"v_mov_b32 v{LG+w}, 0")
        for i in range(10):
            a(f"v_dot2_f32_bf16 v{LG+w}, v{Q+i}, v{KB+w*10+i}, v{LG+w}")
    for w in range(0, 8, 2):
        a(f"v_cvt_pk_bf16_f32 v{200+w//2}, v{LG+w}, v{LG+w+1}")
    a("s_nop 0")
    for w in range(0, 8, 2):
        a(f"v_lshlrev_b32 v{LG+w}, 16, v{200+w//2}")
        a(f"v_and_b32 v{LG+w+1}, 0xffff0000, v{200+w//2}")
    for w in range(8):
        a(f"v_mul_f32 v{LG+w}, 0x3e64f92e, v{LG+w}")
    for w in range(0, 8, 2):
        a(f"v_cvt_pk_bf16_f32 v{200+w//2}, v{LG+w}, v{LG+w+1}")
    a("s_nop 0")
    for w in range(0, 8, 2):
        a(f"v_lshlrev_b32 v{LG+w}, 16, v{200+w//2}")
        a(f"v_and_b32 v{LG+w+1}, 0xffff0000, v{200+w//2}")
    for w in range(1, 8):
        a(f"v_cmp_gt_u32 vcc, {2*w}, v3")
        a("s_nop 1")
        a(f"v_cndmask_b32 v{LG+w}, v{LG+w}, v7, vcc" if False else f"v_mov_b32 v7, 0xce6e6b28")
        a(f"v_cndmask_b32 v{LG+w}, v{LG+w}, v7, vcc")
    a(f"v_max_f32 v8, v{LG}, v{LG+1}")
    for w in range(2, 8):
        a(f"v_max_f32 v8, v8, v{LG+w}")
    a("v_mov_b32 v9, 0")
    for w in range(8):
        a(f"v_sub_f32 v{LG+w}, v{LG+w}, v8")
        a(f"v_mul_f32 v{LG+w}, 0x3fb8aa3b, v{LG+w}")
        a(f"v_exp_f32 v{LG+w}, v{LG+w}")
    a("s_nop 1")
    for w in range(8):
        a(f"v_add_f32 v9, v9, v{LG+w}")
    a("v_rcp_f32 v9, v9")
    a("s_nop 1")
    for w in range(8):
        a(f"v_mul_f32 v{LG+w}, v{LG+w}, v9")
    for w in range(0, 8, 2):
        a(f"v_cvt_pk_bf16_f32 v{200+w//2}, v{LG+w}, v{LG+w+1}")
    a("s_nop 0")
    for w in range(0, 8, 2):
        a(f"v_lshlrev_b32 v{LG+w}, 16, v{200+w//2}")
        a(f"v_and_b32 v{LG+w+1}, 0xffff0000, v{200+w//2}")
    O = 204
    for d in range(20):
        a(f"v_mov_b32 v{O+d}, 0")
    for w in range(8):
        for i in range(10):
            a(f"v_lshlrev_b32 v10, 16, v{VB+w*10+i}")
            a(f"v_and_b32 v11, 0xffff0000, v{VB+w*10+i}")
            a(f"v_fmac_f32 v{O+2*i}, v{LG+w}, v10")
            a(f"v_fmac_f32 v{O+2*i+1}, v{LG+w}, v11")
    for i in range(10):
        a(f"v_cvt_pk_bf16_f32 v{Q+i}, v{O+2*i}, v{O+2*i+1}")
    a(f"v_mul_u32_u24 v5, {K2*2}, v3")
    a("v_add_u32 v5, v5, v4")
    for i in range(5):
        a(f"buffer_store_dwordx2 v[{Q+2*i}:{Q+2*i+1}], v5, s[16:19], 0 offen offset:{8*i}")
    a("s_waitcnt vmcnt(0)")
    a.label("at_done")
    a("s_endpgm")
    return name, 232

G2_NS = 6
G2_STAGE = 20480
G2_WOFF = 8192
G2_LDS = G2_NS * G2_STAGE
def gen_gemm2(a):
    name = "gemm2_kernel"
    kernel_header(a, name)
    a("s_cmp_ge_u32 s2, 256")
    a("s_cbranch_scc1 g2_done")
    a("s_load_dwordx2 s[4:5], s[0:1], 16")
    a("s_load_dwordx2 s[8:9], s[0:1], 48")
    a("s_load_dwordx2 s[6:7], s[0:1], 72")
    a("s_load_dwordx2 s[10:11], s[0:1], 0")
    a("s_load_dwordx2 s[56:57], s[0:1], 56")
    a("s_and_b32 s12, s2, 7")
    a("s_lshr_b32 s13, s2, 3")
    a("s_lshr_b32 s14, s12, 1")
    a("s_lshl_b32 s14, s14, 3")
    a("s_and_b32 s15, s13, 7")
    a("s_add_u32 s14, s14, s15")
    a("s_and_b32 s15, s12, 1")
    a("s_lshl_b32 s15, s15, 2")
    a("s_lshr_b32 s16, s13, 3")
    a("s_add_u32 s15, s15, s16")
    a("v_lshrrev_b32 v1, 6, v0")
    a("s_nop 0")
    a("v_readfirstlane_b32 s17, v1")
    a("v_and_b32 v2, 63, v0")
    a("s_waitcnt lgkmcnt(0)")
    a(f"s_add_u32 s6, s6, {A2_OFF}")
    a("s_addc_u32 s7, s7, 0")
    make_srd(a, 20, 6, 7, A2_BYTES)
    make_srd(a, 24, 4, 5, D * D * 2)
    make_srd(a, 28, 8, 9, F * D * 2)
    for e in range(2):
        a("v_lshrrev_b32 v6, 4, v2")
        a(f"v_add_u32 v6, {4*e}, v6")
        a("v_and_b32 v6, 7, v6")
        a("v_and_b32 v7, 7, v2")
        a("v_xor_b32 v7, v7, v6")
        a("v_lshrrev_b32 v8, 3, v2")
        a(f"v_mul_u32_u24 v8, {K2*2}, v8")
        a(f"v_lshl_add_u32 v{3+e}, v7, 4, v8")
    a("s_lshl_b32 s34, s14, 6")
    a("s_lshl_b32 s35, s17, 4")
    a("s_add_u32 s35, s34, s35")
    a(f"s_mul_i32 s32, s35, {K2*2}")
    a(f"s_add_u32 s33, s32, {8*K2*2-1024}")
    for j in range(3):
        a(f"v_add_u32 v10, {64*j}, v2")
        a("v_mul_u32_u24 v11, 0xaaab, v10")
        a("v_lshrrev_b32 v11, 19, v11")
        a("v_mul_u32_u24 v12, 12, v11")
        a("v_sub_u32 v12, v10, v12")
        a("v_lshrrev_b32 v13, 1, v12")
        a("v_lshrrev_b32 v14, 3, v11")
        a("v_and_b32 v14, 1, v14")
        a("v_xor_b32 v13, v13, v14")
        a("v_min_u32 v13, 4, v13")
        a("v_and_b32 v12, 1, v12")
        a("v_lshlrev_b32 v13, 5, v13")
        a("v_lshl_add_u32 v13, v12, 4, v13")
        a("v_mul_u32_u24 v11, 0x500, v11")
        a("v_add_u32 v13, v13, v11")
        a(f"v_subrev_u32 v{5+j}, {1024*j}, v13")
    a("s_mul_i32 s60, s15, 160")
    a("s_mul_i32 s36, s17, 0x5000")
    a("s_add_u32 s36, s36, s60")
    a("s_lshl_b32 s37, s17, 11")
    a("s_mul_i32 s38, s17, 3072")
    a(f"s_add_u32 s38, s38, {G2_WOFF}")
    a("v_and_b32 v12, 15, v2")
    a("v_add_u32 v12, s35, v12")
    a("v_subrev_u32 v12, s34, v12")
    a("v_lshrrev_b32 v13, 1, v12")
    a("v_and_b32 v13, 7, v13")
    a("v_lshrrev_b32 v14, 4, v2")
    for ks in range(2):
        a(f"v_add_u32 v15, {4*ks}, v14")
        a("v_xor_b32 v15, v15, v13")
        a("v_lshlrev_b32 v15, 4, v15")
        a(f"v_lshl_add_u32 v{10+ks}, v12, 7, v15")
    a("v_lshrrev_b32 v14, 4, v2")
    a("v_lshlrev_b32 v15, 3, v14")
    a("v_and_b32 v16, 15, v2")
    a("v_lshrrev_b32 v17, 2, v16")
    a("v_add_u32 v15, v15, v17")
    a("v_mul_u32_u24 v15, 192, v15")
    a("v_and_b32 v16, 3, v16")
    a("v_lshl_add_u32 v15, v16, 3, v15")
    a(f"v_add_u32 v15, {G2_WOFF}, v15")
    a("v_and_b32 v14, 1, v14")
    a("v_lshlrev_b32 v14, 5, v14")
    a("v_add_u32 v12, v15, v14")
    a("v_sub_u32 v13, v15, v14")
    for i in range(4):
        a(f"v_add_u32 v{30+i}, {3*G2_STAGE}, v{10+i}")
    for i in range(20):
        a(f"v_mov_b32 v{100+i}, 0")
    NST = K2 // 64
    def issue_dma(st):
        slot = st % G2_NS
        k0 = st * 64
        a(f"s_add_u32 m0, s37, {slot*G2_STAGE}")
        a(f"s_add_u32 s39, s32, {k0*2}")
        a(f"s_add_u32 s40, s33, {k0*2}")
        a("buffer_load_dwordx4 v3, s[20:23], s39 offen lds")
        a("buffer_load_dwordx4 v4, s[20:23], s40 offen offset:1024 lds")
        a(f"s_add_u32 m0, s38, {slot*G2_STAGE}")
        srd, kr = (24, k0) if k0 < 640 else (28, k0 - 640)
        a(f"s_add_u32 s39, s36, {kr*1280}")
        for j in range(3):
            a(f"buffer_load_dwordx4 v{5+j}, s[{srd}:{srd+3}], s39 offen offset:{1024*j} lds")
    XF = 40
    WF = 48
    for st in range(G2_NS - 1):
        issue_dma(st)
    for st in range(NST):
        slot = st % G2_NS
        nout = min(G2_NS - 2, NST - 1 - st)
        a(f"s_waitcnt vmcnt({nout*5})")
        a("s_barrier")
        if st + G2_NS - 1 < NST:
            issue_dma(st + G2_NS - 1)
        base = (slot % 3) * G2_STAGE
        rb = 10 if slot < 3 else 30
        for ks in range(2):
            a(f"ds_read_b128 v[{XF+ks*4}:{XF+ks*4+3}], v{rb+ks} offset:{base}")
            for t in range(5):
                for h in range(2):
                    r = WF + ks * 20 + t * 4 + h * 2
                    a(f"ds_read_b64_tr_b16 v[{r}:{r+1}], v{rb+2+(t&1)} offset:{base+ks*6144+t*32+h*768}")
        for ks in range(2):
            a(f"s_waitcnt lgkmcnt({11 if ks == 0 else 0})")
            for t in range(5):
                acc = 100 + t * 4
                w = WF + ks * 20 + t * 4
                a(f"v_mfma_f32_16x16x32_bf16 v[{acc}:{acc+3}], v[{w}:{w+3}], v[{XF+ks*4}:{XF+ks*4+3}], v[{acc}:{acc+3}]")
    a("s_nop 15")
    make_srd(a, 40, 10, 11, XN_BYTES)
    make_srd(a, 44, 56, 57, XN_BYTES)
    a("v_and_b32 v14, 15, v2")
    a("v_add_u32 v14, s35, v14")
    a("v_mul_u32_u24 v14, 0x500, v14")
    a("v_lshrrev_b32 v15, 4, v2")
    a("v_lshl_add_u32 v14, v15, 3, v14")
    for t in range(5):
        a(f"buffer_load_dwordx2 v[{20+2*t}:{21+2*t}], v14, s[40:43], s60 offen offset:{32*t}")
    a("s_waitcnt vmcnt(0)")
    for t in range(5):
        for i in range(2):
            a(f"v_lshlrev_b32 v30, 16, v{20+2*t+i}")
            a(f"v_and_b32 v31, 0xffff0000, v{20+2*t+i}")
            a(f"v_add_f32 v{100+4*t+2*i}, v{100+4*t+2*i}, v30")
            a(f"v_add_f32 v{101+4*t+2*i}, v{101+4*t+2*i}, v31")
        a(f"v_cvt_pk_bf16_f32 v{20+2*t}, v{100+4*t}, v{101+4*t}")
        a(f"v_cvt_pk_bf16_f32 v{21+2*t}, v{102+4*t}, v{103+4*t}")
    for t in range(5):
        a(f"buffer_store_dwordx2 v[{20+2*t}:{21+2*t}], v14, s[44:47], s60 offen offset:{32*t}")
    a("s_waitcnt vmcnt(0)")
    a.label("g2_done")
    a("s_endpgm")
    return name, 128

def main():
    a = Asm()
    hdr = open("cdna_kernels/" + NAME + ".s.ref").read().split("\n")
    top = [l for l in hdr if l.startswith(";") and "@launch" not in l and "Override" not in l and "grid=ceil" not in l]
    out = "\n".join(top) + "\n"
    out += "; @launch kernel=ln_kernel grid=(512,1,1) block=(256,1,1) lds=0\n"
    out += f"; @launch kernel=gemm1_kernel grid=(224,1,1) block=(512,1,1) lds={G1_LDS}\n"
    out += "; @launch kernel=attn_kernel grid=(256,1,1) block=(256,1,1) lds=0\n"
    out += f"; @launch kernel=gemm2_kernel grid=(256,1,1) block=(256,1,1) lds={G2_LDS}\n"
    out += '.amdgcn_target "amdgcn-amd-amdhsa--gfx950"\n.text\n'
    ks = []
    for g in (gen_ln, gen_gemm1, gen_attn, gen_gemm2):
        ks.append(g(a))
    out += a.text()
    out += '.section .rodata,"a"\n.p2align 6\n'
    for n, v in ks:
        out += ".p2align 6\n" + kernel_desc(n, v)
    path = sys.argv[1] if len(sys.argv) > 1 else "cdna_kernels/" + NAME + ".s"
    open(path, "w").write(out)
    print("wrote", path, len(out))
main()
```
